```python
import torch

def _softmax(x, axis=-1):
    return torch.softmax(x, dim=axis)
def _gelu(x):
    return torch.nn.functional.gelu(x, approximate="tanh")
def _silu(x):
    return torch.nn.functional.silu(x)
def _sigmoid(x):
    return torch.sigmoid(x)
def _layernorm(x, axis=-1, eps=1e-5):
    m = x.mean(dim=axis, keepdim=True)
    v = x.var(dim=axis, keepdim=True, unbiased=False)
    return (x - m) / torch.sqrt(v + eps)
def _scatter_add(tgt, idx, src, axis=0):
    return tgt.clone().index_add_(axis, idx, src)
def _segment_sum(src, seg, n):
    out = torch.zeros((n,) + src.shape[1:], dtype=src.dtype)
    return out.index_add_(0, seg, src)
def _pad(x, pw):
    flat = tuple(v for pair in reversed(pw) for v in pair)
    return torch.nn.functional.pad(x, flat)

kernel_name = 'concat_heads__gqa_block_cached__mha_block_cached__near_ridge'

def setup_inputs():

    _w = (lambda a: (lambda t: t.to(torch.bfloat16) if t.is_floating_point() else t)(torch.as_tensor(a)))
    def _A_setup():
        B, Sq, D = 32, 64, 512
        Hq, Hkv, Sk, Dh = 32, 8, 512, 128
        assert Hq % Hkv == 0, (Hq, Hkv)
        return {
            "x": _w((lambda *s: torch.randn(*s, dtype=torch.bfloat16) * 0.8)(B, Sq, D)),
            "k_cache": _w((lambda *s: torch.randn(*s, dtype=torch.bfloat16) * 0.8)(B, Hkv, Sk, Dh)),
            "v_cache": _w((lambda *s: torch.randn(*s, dtype=torch.bfloat16) * 0.05)(B, Hkv, Sk, Dh)),
            "wq": _w((lambda *s: torch.randn(*s, dtype=torch.bfloat16) * 0.8)(D, Hq * Dh) * (D ** -0.5)),
            "wo": _w((lambda *s: torch.randn(*s, dtype=torch.bfloat16) * 0.05)(Hq * Dh, D) * ((Hq * Dh) ** -0.5)),
        }
    _A_in = _A_setup()

    def _B_setup():
        B, Sq, D = 32, 64, 512
        H, Sk, Dh = 32, 512, 128
        return {
            "x": _w((lambda *s: torch.randn(*s, dtype=torch.bfloat16) * 0.8)(B, Sq, D)),
            "k_cache": _w((lambda *s: torch.randn(*s, dtype=torch.bfloat16) * 0.8)(B, H, Sk, Dh)),
            "v_cache": _w((lambda *s: torch.randn(*s, dtype=torch.bfloat16) * 0.05)(B, H, Sk, Dh)),
            "wq": _w((lambda *s: torch.randn(*s, dtype=torch.bfloat16) * 0.8)(D, H * Dh) * (D ** -0.5)),
            "wo": _w((lambda *s: torch.randn(*s, dtype=torch.bfloat16) * 0.05)(H * Dh, D) * ((H * Dh) ** -0.5)),
        }
    _B_in = _B_setup()

    return {
        "A_x": _A_in["x"],
        "A_k_cache": _A_in["k_cache"],
        "A_v_cache": _A_in["v_cache"],
        "A_wq": _A_in["wq"],
        "A_wo": _A_in["wo"],
        "B_x": _B_in["x"],
        "B_k_cache": _B_in["k_cache"],
        "B_v_cache": _B_in["v_cache"],
        "B_wq": _B_in["wq"],
        "B_wo": _B_in["wo"],
    }

def reference(A_x, A_k_cache, A_v_cache, A_wq, A_wo, B_x, B_k_cache, B_v_cache, B_wq, B_wo):
    def _A_ref(x, k_cache, v_cache, wq, wo):
        B, Sq, D = x.shape
        Hq, Dh = 32, 128
        Hkv = k_cache.shape[1]
        rep = Hq // Hkv
        q = (lambda x, *d: x.permute(*d))((x @ wq).reshape(B, Sq, Hq, Dh), 0, 2, 1, 3)
        k = (lambda x, n, axis: torch.repeat_interleave(x, n, dim=axis))(k_cache, rep, axis=1)
        v = (lambda x, n, axis: torch.repeat_interleave(x, n, dim=axis))(v_cache, rep, axis=1)
        scores = torch.einsum("bhqd,bhkd->bhqk", q, k) * (Dh ** -0.5)
        p = _softmax(scores, axis=-1)
        o = torch.einsum("bhqk,bhkd->bhqd", p, v)
        return (lambda x, *d: x.permute(*d))(o, 0, 2, 1, 3).reshape(B, Sq, Hq * Dh) @ wo

    def _B_ref(x, k_cache, v_cache, wq, wo):
        B, Sq, D = x.shape
        H, Dh = 32, 128
        q = (lambda x, *d: x.permute(*d))((x @ wq).reshape(B, Sq, H, Dh), 0, 2, 1, 3)
        scores = torch.einsum("bhqd,bhkd->bhqk", q, k_cache) * (Dh ** -0.5)
        p = _softmax(scores, axis=-1)
        o = torch.einsum("bhqk,bhkd->bhqd", p, v_cache)
        return (lambda x, *d: x.permute(*d))(o, 0, 2, 1, 3).reshape(B, Sq, H * Dh) @ wo

    a = _A_ref(A_x, A_k_cache, A_v_cache, A_wq, A_wo)
    b = _B_ref(B_x, B_k_cache, B_v_cache, B_wq, B_wo)
    return torch.concatenate([a, b], axis=-1)
```

```python
import re

_REG = re.compile(r'^(-|abs\()?([vas])(?:(\d+)|\[(\d+):(\d+)\])\)?$')

def regs(tok):
    tok = tok.strip()
    if tok in ("vcc", "m0", "exec", "scc"):
        return [tok]
    m = _REG.match(tok)
    if not m:
        return []
    f = m.group(2)
    if m.group(3) is not None:
        return [f + m.group(3)]
    return [f + str(i) for i in range(int(m.group(4)), int(m.group(5)) + 1)]

TRANS = ("v_exp_f32", "v_log_f32", "v_rcp_f32", "v_rsq_f32", "v_sqrt_f32")

class Inst:
    __slots__ = ("text", "kind", "rd", "wr", "tag", "srcc", "expect", "val", "op")
    def __init__(self, text, tag=None, expect=None, val=None):
        self.text = text; self.tag = tag; self.expect = expect; self.val = val
        self.srcc = []
        t = text.split(";")[0].strip()
        if t.endswith(":"):
            self.kind = "label"; self.rd = []; self.wr = []; self.op = ""; return
        if t.startswith("."):
            self.kind = "dir"; self.rd = []; self.wr = []; self.op = ""; return
        parts = t.split(None, 1)
        op = parts[0]; self.op = op
        rest = parts[1] if len(parts) > 1 else ""
        toks = [x.strip() for x in rest.split(",")] if rest else []
        if toks:
            toks[-1] = toks[-1].split()[0] if toks[-1] else toks[-1]
        R = [regs(x) for x in toks]
        flat = lambda l: [r for x in l for r in x]
        if op.startswith("v_mfma"):
            self.kind = "mfma"; self.wr = R[0]; self.rd = R[1] + R[2] + R[3]; self.srcc = R[3]
        elif op.startswith("ds_read"):
            self.kind = "dsr"; self.wr = R[0]; self.rd = flat(R[1:])
        elif op.startswith("ds_write") or op.startswith("ds_add"):
            self.kind = "dsw"; self.wr = []; self.rd = flat(R)
        elif op.startswith("buffer_load") and re.search(r'\blds\b', rest):
            self.kind = "dma"; self.wr = []; self.rd = flat(R) + ["m0"]
        elif op.startswith("buffer_load"):
            self.kind = "vld"; self.wr = R[0]; self.rd = flat(R[1:])
        elif op.startswith("buffer_atomic"):
            self.kind = "vld" if re.search(r'\bsc0\b', rest) else "vst"
            self.wr = R[0] if self.kind == "vld" else []; self.rd = flat(R)
        elif op.startswith("buffer_store"):
            self.kind = "vst"; self.wr = []; self.rd = flat(R)
        elif op in ("buffer_wbl2", "buffer_inv"):
            self.kind = "vst"; self.wr = []; self.rd = []
        elif op.startswith("v_permlane"):
            self.kind = "valu"; self.wr = flat(R); self.rd = flat(R)
        elif op.startswith("v_"):
            self.kind = "trans" if op in TRANS else "valu"
            self.wr = R[0] if R else []; self.rd = flat(R[1:])
            if op.startswith("v_fmac") or op.startswith("v_dot2c"): self.rd = self.rd + self.wr
        elif op in ("s_waitcnt",):
            self.kind = "wait"; self.rd = []; self.wr = []
        elif op == "s_nop":
            self.kind = "nop"; self.rd = []; self.wr = []
        elif op == "s_barrier":
            self.kind = "barrier"; self.rd = []; self.wr = []
        elif op.startswith("s_cbranch") or op in ("s_branch", "s_endpgm", "s_setprio", "s_sleep"):
            self.kind = "ctl"; self.rd = []; self.wr = []
            if "vcc" in op: self.rd = ["vcc"]
        elif op.startswith("s_cmp") or op.startswith("s_bitcmp"):
            self.kind = "salu"; self.wr = []; self.rd = flat(R)
        elif op.startswith("s_load") or op.startswith("s_memtime") or op.startswith("s_memrealtime"):
            self.kind = "smem"; self.wr = R[0]; self.rd = flat(R[1:])
        elif op.startswith("s_"):
            self.kind = "salu"; self.wr = R[0] if R else []; self.rd = flat(R[1:])
        else:
            raise ValueError("unknown op: " + text)

class Pseudo:
    def __init__(self, kind, arg=None):
        self.kind = kind; self.arg = arg

def finalize(seq, stats=None):
    out = []
    pos = 0
    lastw = {}
    lastc = {}
    lastst = {}
    ldsq = []
    vmq = []
    vals = {}
    nnop = 0; nwait = 0
    pend = {"vm": None, "lg": None}
    def flush():
        nonlocal pos, nwait
        if pend["vm"] is None and pend["lg"] is None: return
        s = "s_waitcnt"
        if pend["vm"] is not None: s += " vmcnt(%d)" % pend["vm"]
        if pend["lg"] is not None: s += " lgkmcnt(%d)" % pend["lg"]
        out.append(s); pos += 1; nwait += 1
        pend["vm"] = None; pend["lg"] = None
    def need_lds(idx):
        n = min(len(ldsq) - idx - 1, 15)
        del ldsq[:len(ldsq) - n]
        pend["lg"] = n if pend["lg"] is None else min(pend["lg"], n)
    def need_vm(idx):
        n = min(len(vmq) - idx - 1, 63)
        del vmq[:len(vmq) - n]
        pend["vm"] = n if pend["vm"] is None else min(pend["vm"], n)
    for it in seq:
        if isinstance(it, Pseudo):
            if it.kind == "waitvm":
                idx = [i for i, (t, _) in enumerate(vmq) if t == it.arg]
                if idx: need_vm(idx[-1])
            elif it.kind == "waitlds":
                idx = [i for i, d in enumerate(ldsq) if d.tag == it.arg]
                if idx: need_lds(idx[-1])
            elif it.kind == "reset":
                flush()
                lastw.clear(); lastc.clear(); lastst.clear(); ldsq.clear(); vals.clear()
                vmq[:] = [(t, []) for t in (it.arg or [])]
            elif it.kind == "comment":
                out.append("; " + it.arg)
            continue
        k = it.kind
        if k in ("label", "dir"):
            flush(); out.append(it.text); continue
        if k == "wait":
            flush()
            m = re.search(r'vmcnt\((\d+)\)', it.text)
            if m:
                n = int(m.group(1))
                if len(vmq) > n: del vmq[:len(vmq) - n]
            m = re.search(r'lgkmcnt\((\d+)\)', it.text)
            if m:
                n = int(m.group(1))
                if len(ldsq) > n: del ldsq[:len(ldsq) - n]
            out.append(it.text); pos += 1; continue
        if k == "nop":
            flush(); out.append(it.text); pos += int(it.text.split()[1]) + 1; continue
        touched = set(it.rd) | set(it.wr)
        idx = [i for i, d in enumerate(ldsq) if touched.intersection(d.wr)]
        if idx: need_lds(idx[-1])
        if k in ("dsr", "dsw") and len(ldsq) >= 15: need_lds(len(ldsq) - 15)
        idx = [i for i, (_, w) in enumerate(vmq) if touched.intersection(w)]
        if idx: need_vm(idx[-1])
        if k in ("dma", "vld", "vst") and len(vmq) >= 63: need_vm(len(vmq) - 63)
        flush()
        req = 0
        def want(ppos, n):
            nonlocal req
            req = max(req, n - (pos - ppos - 1))
        isv = k in ("valu", "trans")
        for r in it.rd:
            if r not in lastw: continue
            pp, pk, pi = lastw[r]
            if pk == "mfma":
                if k == "mfma":
                    if r in it.srcc and r not in it.rd[:len(it.rd) - len(it.srcc)]:
                        if it.srcc != pi.wr: want(pp, 10)
                    else: want(pp, 12)
                else: want(pp, 12)
            elif pk in ("valu", "trans"):
                if r[0] in "va" and r != "vcc":
                    if k == "mfma": want(pp, 2)
                    if it.op.startswith("v_permlane"): want(pp, 2)
                    if it.op.startswith("v_readfirstlane") or it.op.startswith("v_readlane"): want(pp, 1)
                    if pk == "trans" and k != "trans": want(pp, 1)
                else:
                    if isv: want(pp, 2)
                    elif k in ("dma", "vld", "vst"): want(pp, 5)
                    else: want(pp, 4)
            elif pk == "salu":
                if r == "m0" and k == "dma": want(pp, 1)
        for r in it.wr:
            if r in lastw and lastw[r][1] == "mfma" and k != "mfma": want(lastw[r][0], 12)
            if r in lastw and lastw[r][1] == "mfma" and k == "mfma" and (it.srcc != lastw[r][2].wr): want(lastw[r][0], 10)
            if r in lastc and k != "mfma": want(lastc[r], 7)
            if r in lastst: want(lastst[r], 2)
        while req > 0:
            n = min(req, 16)
            out.append("s_nop %d" % (n - 1)); pos += n; req -= n; nnop += n
        if it.expect:
            for r, v in it.expect.items():
                if vals.get(r) != v:
                    raise RuntimeError("value check failed at '%s': %s holds %s, expected %s" % (it.text, r, vals.get(r), v))
        out.append(it.text)
        for r in it.wr:
            lastw[r] = (pos, k, it)
            vals[r] = it.val
        if k == "mfma":
            for r in it.srcc: lastc[r] = pos
        if k in ("vst", "dsw"):
            for r in it.rd:
                if r[0] in "va": lastst[r] = pos
        if k in ("dsr", "dsw"):
            ldsq.append(it)
        if k in ("dma", "vld", "vst"):
            vmq.append((it.tag, it.wr))
        pos += 1
    flush()
    if stats is not None:
        stats["nops"] = nnop; stats["waits"] = nwait; stats["lines"] = len(out)
    return out
```

```python
NAME = "concat_heads__gqa_block_cached__mha_block_cached__near_ridge"
HEADER = open("cdna_kernels/%s.s.ref" % NAME).read().split("; Override launch")[0]

def wrap(body, grid=256, block=256, lds=0, vgpr=256, accum=256, sgpr=102, name=None):
    name = name or NAME + "_kernel"
    s = HEADER
    s += "; @launch grid=(%d,1,1) block=(%d,1,1) lds=%d\n" % (grid, block, lds)
    s += '.amdgcn_target "amdgcn-amd-amdhsa--gfx950"\n.text\n.globl %s\n.p2align 8\n.type %s,@function\n%s:\n' % (name, name, name)
    s += body
    s += '\n.section .rodata,"a"\n.p2align 6\n.amdhsa_kernel %s\n' % name
    s += "  .amdhsa_next_free_vgpr %d\n  .amdhsa_next_free_sgpr %d\n  .amdhsa_accum_offset %d\n" % (vgpr, sgpr, accum)
    s += "  .amdhsa_group_segment_fixed_size 0\n  .amdhsa_kernarg_size 104\n  .amdhsa_user_sgpr_count 2\n  .amdhsa_user_sgpr_kernarg_segment_ptr 1\n  .amdhsa_system_sgpr_workgroup_id_x 1\n.end_amdhsa_kernel\n"
    return s

def srd(d, b, nbytes):
    return "s_mov_b32 s%d, s%d\ns_and_b32 s%d, s%d, 0xffff\ns_mov_b32 s%d, 0x%x\ns_mov_b32 s%d, 0x20000\n" % (d, b, d+1, b+1, d+2, nbytes, d+3)
```

```python
import sys, math, struct
from asmlib import Inst, Pseudo, finalize
from common import NAME, HEADER

def f32(x): return struct.unpack("<I", struct.pack("<f", x))[0]

class Opt:
    kv = "nt"; w = ""; x = "nt"; st = ""; rl = ""
    stamps = False
    LA = 4
    rot = True
    cls = None
O = Opt()

KA = [8, 16]; VA = [24, 28]
VK, VX, VQ, VO, VV, VKVA = 32, 36, 40, 44, 48, 49
LR = 53
EXW, EXR, VL16 = 57, 58, 59
S = [64, 80]; P = [96, 104]; SP = 64; TT = 112
BIG = 128
QF = [0, 32]; KF = 64; VF = 96; RR = [128, 160, 192, 224]
SRD = dict(XA=8, KA=12, VA=16, WQA=20, WOA=24, XB=28, KB=32, VB=36, WQB=40, WOB=44, KVA=48, WS=52, AUX=56)
sW = 3; sBXx, sBXq, sBXo, sBXkB, sBXkA, sM, sT, sPB, sPhase = 60, 61, 62, 63, 64, 65, 66, 67, 68
sXB1, sXA1, sXB2, sXA2, sVA1 = 69, 70, 71, 72, 73
sC, sLo, sHi, sEX = 74, 76, 77, 78
sT2, sT3, sT4 = 79, 80, 81
sST = 84
EXBASE = 131072
WS_STAMP = 536870912 - 65536 * 4

def srd(n): return "s[%d:%d]" % (SRD[n], SRD[n] + 3)
def vr(b, n): return "v[%d:%d]" % (b, b + n - 1)
def ar(b, n): return "a[%d:%d]" % (b, b + n - 1)
def rr(f, b, n): return "%s[%d:%d]" % (f, b, b + n - 1)

def I(t, **k): return Inst(t, **k)
def L(txt): return [Inst(x) for x in txt.strip().split("\n") if x.strip()]

def swap2(i): return ((i & 1) << 1) | (i >> 1)

def load_slot(d, ring, tag):
    t = d[0]
    if t == "X":   bx, imm, sr, vo, fl = sBXx, d[2] << 8, "X" + d[1], [VX + i for i in range(4)], O.x
    elif t == "WQ": bx, imm, sr, vo, fl = sBXq, (d[3] << 18) ^ (d[2] << 9), "WQ" + d[1], [VQ + i for i in range(4)], O.w
    elif t == "KB": bx, imm, sr, vo, fl = sBXkB, (d[2] << 13) ^ (d[1] << 18), "KB", [VK + i for i in range(4)], O.kv
    elif t == "VB": bx, imm, sr, vo, fl = sBXkB, (d[2] << 13) ^ (d[1] << 18), "VB", [VV] * 4, O.kv
    elif t == "KVA": bx, imm, sr, vo, fl = sBXkA, d[1] << 13, "KVA", [VKVA + i for i in range(4)], O.kv
    elif t == "WO": bx, imm, sr, vo, fl = sBXo, (d[2] << 18) ^ (d[4] << 17) ^ (d[5] << 15) ^ (d[3] << 8), "WO" + d[1], [VO + i for i in range(4)], O.w
    setup = [I("s_xor_b32 m0, s%d, 0x%x" % (sM, ring << 14)), I("s_xor_b32 s%d, s%d, 0x%x" % (sT, bx, imm))]
    lds = [I("buffer_load_dwordx4 v%d, %s, s%d offen offset:%d %s lds" % (vo[i], srd(sr), sT, i * 1024, fl), tag=tag) for i in range(4)]
    return setup, lds

def slots_of(br):
    X = [("X", br, j) for j in range(4)]
    Q = lambda r: [("WQ", br, r, kc) for kc in range(16)]
    W = lambda r: [("WO", br, r, nb, j, db) for nb in range(2) for j in range(2) for db in range(4)]
    if br == "B":
        def AT(r):
            s = [("KB", r, 0)]
            for i in range(15): s += [("KB", r, i + 1), ("VB", r, i)]
            return s + [("VB", r, 15)]
        return X + Q(0) + AT(0) + Q(1) + W(0) + AT(1) + W(1)
    return X + Q(0) + Q(1) + [("KVA", i) for i in range(16)] + W(0) + W(1)

class Sched:
    def __init__(self, br):
        self.br = br; self.g = []
        other = "A" if br == "B" else "B"
        self.slots = slots_of(br); self.n = len(self.slots)
        self.all = self.slots + slots_of(other)[:7]
        self.s = 0; self.bar = {-1: -1}
        self.tail = []
        self.nst = 0
    def seg(self, ms):
        b = len(self.g)
        for m in ms: self.g.append(dict(pre=[], m=m, sync=[], rd=[], va=[], dma=[], post=[]))
        return b
    def step(self, g0, span):
        s = self.s; self.s += 1
        self.bar[s] = g0
        self.g[g0]["sync"] += [Pseudo("waitlds", ("rd", s - 1)), Pseudo("waitlds", "exw"), Pseudo("waitvm", ("slot", s + 1)), I("s_barrier")]
        setup, lds = load_slot(self.all[s + 7], (s + 7) % 8, ("slot", s + 7))
        self.g[g0]["dma"] += setup
        for i, x in enumerate(lds):
            self.g[g0 + (min(span - 1, 1 + i * (span // 4)) if span > 1 else 0)]["dma"].append(x)
        return s
    def place_rd(self, s, want, ins):
        g = max(want, self.bar[s - 1])
        assert g >= 0
        self.g[g]["rd"] += ins
    def kread(self, s, t, f, dst, val):
        ring = s % 8
        return [I("ds_read_b128 %s, v%d offset:%d" % (rr(f, dst, 4), KA[ring // 4] + t, (ring % 4) << 14), tag=("rd", s), val=val)]
    def vread(self, s, db, u, dst, val):
        ring = s % 8
        return [I("ds_read_b64_tr_b16 %s, v%d offset:%d" % (ar(dst + 2 * j, 2), VA[ring // 4] + db, ((ring % 4) << 14) + u * 4096 + j * 2048),
                  tag=("rd", s), val=val) for j in range(2)]
    def stamp(self):
        if not O.stamps: return []
        r = sST + self.nst + (8 if self.br == "A" else 0); self.nst += 1
        assert self.nst <= 8
        return L("s_waitcnt lgkmcnt(0)\ns_memrealtime s[82:83]\ns_waitcnt lgkmcnt(0)\ns_mov_b32 s%d, s82" % r)
    def flat(self):
        out = []
        for g in self.g:
            out += g["pre"]
            if g["m"] is not None: out.append(g["m"])
            out += g["sync"] + g["rd"] + g["va"] + g["dma"] + g["post"]
        return out

def mfma(df, d, a, bf, b, first, aval):
    c = "0" if first else rr(df, d, 16)
    return I("v_mfma_f32_32x32x16_bf16 %s, %s, %s, %s" % (rr(df, d, 16), ar(a, 4), rr(bf, b, 4), c),
             expect={"a%d" % (a + i): aval for i in range(4)})

def xor_regs(base, n, sreg): return [I("v_xor_b32 v%d, s%d, v%d" % (base + i, sreg, base + i)) for i in range(n)]

def blk_X(c):
    for j in range(4):
        g = c.seg([None])
        for t in range(8): c.g[g]["pre"] += c.kread(c.s, t, "v", BIG + (8 * j + t) * 4, None)
        c.step(g, 1)
    c.g[g]["post"] += xor_regs(KA[0], 16, sXB1 if c.br == "B" else sXA1)

def wstep(c, par, accf, acc, bf, b, first):
    fb = VF if par else KF
    s = c.s
    ms = [mfma(accf, acc + 16 * db, fb + 4 * (4 * u + db), bf, b + 4 * u, first and u == 0, ("w", s, u, db)) for u in range(2) for db in range(4)]
    g = c.seg(ms)
    c.step(g, 8)
    for u in range(2):
        for db in range(4):
            f = 4 * u + db
            c.place_rd(s, g + f - O.LA - 1, c.vread(s, db, u, fb + 4 * f, ("w", s, u, db)))
    return g

def blk_Q(c, r):
    for kc in range(16):
        g = wstep(c, kc & 1, "v", SP, "v", BIG + 8 * kc, kc == 0)
    e = c.g[g + 7]["post"]
    for k0 in range(0, 32, 8):
        for k in range(k0, k0 + 8): e.append(I("v_pk_mul_f32 %s, %s, s[%d:%d]" % (vr(SP + 2 * k, 2), vr(SP + 2 * k, 2), sC, sC + 1)))
        for k in range(k0, k0 + 8): e.append(I("v_cvt_pk_bf16_f32 v%d, v%d, v%d" % (SP + 2 * k, SP + 2 * k, SP + 2 * k + 1)))
        for k in range(k0, k0 + 8): e.append(I("v_accvgpr_write_b32 a%d, v%d" % (QF[r] + k, SP + 2 * k)))
    e += c.stamp()
    return g

def softmax(c, q0, ch, l):
    for r in range(16):
        c.g[q0 + 10 + r]["va"].append(I("v_exp_f32 v%d, v%d" % (S[ch] + r, S[ch] + r)))
    for r in range(16):
        c.g[q0 + 11 + r]["va"].append(I("v_add_f32 v%d, v%d, v%d" % (l + (r & 1), l + (r & 1), S[ch] + r)))
    for k in range(8):
        c.g[q0 + 12 + 2 * k]["va"].append(I("v_cvt_pk_bf16_f32 v%d, v%d, v%d" % (P[ch] + k, S[ch] + 2 * k, S[ch] + 2 * k + 1)))

def qk_ms(ch, q, val): return [mfma("v", S[ch], KF + 4 * t, "a", q + 4 * t, t == 0, (val, t)) for t in range(8)]
def pv_ms(of, o, ch, first, val):
    return [mfma(of, o + 16 * db, VF + 4 * (4 * u + db), "v", P[ch] + 4 * u, first and u == 0, (val, u, db)) for u in range(2) for db in range(4)]

def slow_path(c, name, q, of, o, ksrd, vsrd, bx, rx):
    e = [Pseudo("reset"), I("L_slow_%s:" % name)]
    e += L("s_waitcnt vmcnt(0) lgkmcnt(0)\ns_nop 15")
    e += L("s_andn2_b32 s%d, s%d, 0x1f000\ns_xor_b32 s%d, s%d, 0x%x" % (sT3, bx, sT3, sT3, rx))
    def tile(sr, vo):
        x = []
        for hf in range(2):
            x += L("s_add_u32 m0, s%d, %d\ns_add_u32 s%d, s%d, %d" % (sEX, hf * 4096, sT, sT2, hf * 4096))
            x += [I("buffer_load_dwordx4 v%d, %s, s%d offen offset:%d lds" % (vo[i], srd(sr), sT, i * 1024)) for i in range(4)]
        return x + L("s_waitcnt vmcnt(0)")
    def qk():
        x = tile(ksrd, [VK + i for i in range(4)])
        for t in range(8):
            x += L("v_and_b32 v61, 0x1fff, v%d\nv_add_u32 v61, s%d, v61\nds_read_b128 %s, v61" % (KA[0] + t, sEX, ar(VF + 4 * t, 4)))
        for t in range(8):
            x.append(I("v_mfma_f32_32x32x16_bf16 %s, %s, %s, %s" % (vr(S[0], 16), ar(VF + 4 * t, 4), ar(q + 4 * t, 4), "0" if t == 0 else vr(S[0], 16))))
        return x
    e += L("v_mov_b32 v62, 0xff800000\ns_mov_b32 s%d, s%d\ns_mov_b32 s%d, 0" % (sT2, sT3, sT4))
    e += [Pseudo("reset"), I("L_slow1_%s:" % name)] + qk()
    for r in range(16): e.append(I("v_max_f32 v62, v62, v%d" % (S[0] + r)))
    e += L("s_add_u32 s%d, s%d, 8192\ns_add_u32 s%d, s%d, 1\ns_cmp_lt_u32 s%d, 16\ns_cbranch_scc1 L_slow1_%s" % (sT2, sT2, sT4, sT4, sT4, name))
    e += L("v_mov_b32 v63, v62\nv_permlane32_swap_b32 v63, v62\nv_max_f32 v62, v62, v63\nv_mov_b32 v60, 0")
    for i in range(64):
        e.append(I("v_mov_b32 v%d, 0" % (o + i)) if of == "v" else I("v_accvgpr_write_b32 a%d, 0" % (o + i)))
    e += L("s_mov_b32 s%d, s%d\ns_mov_b32 s%d, 0\ns_nop 4" % (sT2, sT3, sT4))
    e += [Pseudo("reset"), I("L_slow2_%s:" % name)] + qk()
    for r in range(16): e.append(I("v_sub_f32 v%d, v%d, v62" % (S[0] + r, S[0] + r)))
    for r in range(16): e.append(I("v_exp_f32 v%d, v%d" % (S[0] + r, S[0] + r)))
    for r in range(16): e.append(I("v_add_f32 v60, v60, v%d" % (S[0] + r)))
    for k in range(8): e.append(I("v_cvt_pk_bf16_f32 v%d, v%d, v%d" % (P[0] + k, S[0] + 2 * k, S[0] + 2 * k + 1)))
    e += tile(vsrd, [VV] * 4)
    for db in range(4):
        e += L("v_and_b32 v61, 0x1fff, v%d\nv_add_u32 v61, s%d, v61" % (VA[0] + db, sEX))
        for u in range(2):
            for j in range(2):
                e.append(I("ds_read_b64_tr_b16 %s, v61 offset:%d" % (ar(VF + 4 * (4 * u + db) + 2 * j, 2), u * 4096 + j * 2048)))
    for u in range(2):
        for db in range(4):
            e.append(I("v_mfma_f32_32x32x16_bf16 %s, %s, %s, %s" % (rr(of, o + 16 * db, 16), ar(VF + 4 * (4 * u + db), 4), vr(P[0] + 4 * u, 4), rr(of, o + 16 * db, 16))))
    e += L("s_nop 15\ns_add_u32 s%d, s%d, 8192\ns_add_u32 s%d, s%d, 1\ns_cmp_lt_u32 s%d, 16\ns_cbranch_scc1 L_slow2_%s" % (sT2, sT2, sT4, sT4, sT4, name))
    e += L("v_mov_b32 v63, v60\nv_permlane32_swap_b32 v63, v60\nv_add_f32 v60, v60, v63\ns_nop 4\ns_branch L_back_%s" % name)
    c.tail += e

def o_check(c, name, l, q, of, o, ksrd, vsrd, bx, rx, rl):
    e = L("v_add_f32 v60, v%d, v%d\nv_mov_b32 v63, v60\nv_permlane32_swap_b32 v63, v60\nv_add_f32 v60, v60, v63" % (l, l + 1))
    e += L("v_cmp_nle_f32 vcc, s%d, v60\nv_cmp_nge_f32 s[82:83], s%d, v60\ns_or_b64 vcc, vcc, s[82:83]\ns_cbranch_scc1 L_slow_%s" % (sLo, sHi, name))
    e += [I("L_back_%s:" % name)]
    e += L("v_rcp_f32 v%d, v60\nv_mov_b32 v%d, v%d" % (rl, rl + 1, rl))
    slow_path(c, name, q, of, o, ksrd, vsrd, bx, rx)
    return e

def o_convert(of, o, rl, dst):
    e = []
    for k0 in range(0, 32, 8):
        if of == "a":
            for k in range(16): e.append(I("v_accvgpr_read_b32 v%d, a%d" % (TT + k, o + 2 * k0 + k)))
            src = TT - 2 * k0
        else: src = o
        for k in range(k0, k0 + 8): e.append(I("v_pk_mul_f32 %s, %s, %s" % (vr(src + 2 * k, 2), vr(src + 2 * k, 2), vr(rl, 2))))
        for k in range(k0, k0 + 8): e.append(I("v_cvt_pk_bf16_f32 v%d, v%d, v%d" % (dst + k, src + 2 * k, src + 2 * k + 1)))
    return e

def ex_write(src): return [I("ds_write_b128 v%d, %s offset:%d" % (EXW, vr(src + 4 * f, 4), f * 1024), tag="exw") for f in range(8)]
def ex_read(addr, dst, tag): return [I("ds_read_b128 %s, v%d offset:%d" % (ar(dst + 4 * f, 4), addr, f * 1024), tag=tag) for f in range(8)]

def blk_ATB(c, r):
    q = QF[r]; o = RR[0]
    c.g[-1]["post"] += L("v_mov_b32 v%d, 0\nv_mov_b32 v%d, 0" % (LR, LR + 1))
    qg = {}
    def QK(i):
        s = c.s; g = c.seg(qk_ms(i & 1, q, ("k", r, i))); c.step(g, 8); qg[i] = g
        for t in range(8): c.place_rd(s, g + t - O.LA - 1, c.kread(s, t, "a", KF + 4 * t, (("k", r, i), t)))
    def PV(i):
        s = c.s; g = c.seg(pv_ms("a", o, i & 1, i == 0, ("v", r, i))); c.step(g, 8)
        for u in range(2):
            for db in range(4):
                c.place_rd(s, g + 4 * u + db - O.LA - 1, c.vread(s, db, u, VF + 4 * (4 * u + db), (("v", r, i), u, db)))
        return g
    QK(0); c.seg([None] * 8)
    for i in range(15): QK(i + 1); PV(i)
    c.seg([None] * 8); g = PV(15)
    for i in range(16): softmax(c, qg[i], i & 1, LR)
    e = c.g[g + 7]["post"]
    e += o_check(c, "B%d" % r, LR, q, "a", o, "KB", "VB", sBXkB, r << 18, 0)
    e += o_convert("a", o, 0, SP)
    e += ex_write(SP) + ex_read(EXW, RR[2], None)
    e += c.stamp()
    c.pending = [(0, ex_read(EXR, RR[3], "exr"))]

def blk_ATA(c):
    c.g[-1]["post"] += [I("v_mov_b32 v%d, 0" % (LR + i)) for i in range(4)] + xor_regs(VA[0], 8, sVA1)
    o = [BIG, BIG + 64]
    q0g = {}
    for i in range(17):
        s = c.s
        g = c.seg(qk_ms(0, QF[0], ("k", i)) if i < 16 else [None] * 8); q0g[i] = g
        c.seg(pv_ms("v", o[1], 1, i == 1, ("v", i - 1)) if i > 0 else [None] * 8)
        if i == 16: break
        c.seg(qk_ms(1, QF[1], ("k", i)))
        c.seg(pv_ms("v", o[0], 0, i == 0, ("v", i)))
        c.step(g, 8)
        for t in range(8):
            c.place_rd(s, (g - 9 + t) if i > 0 else (g + t - O.LA - 1), c.kread(s, t, "a", KF + 4 * t, (("k", i), t)))
        for u in range(2):
            for db in range(4):
                f = 4 * u + db
                rd = c.vread(s, db, u, VF + 4 * f, (("v", i), u, db))
                c.place_rd(s, g + 8 + f + f // 2, rd[:1]); c.place_rd(s, g + 9 + f + f // 2, rd[1:])
    for i in range(16):
        softmax(c, q0g[i], 0, LR); softmax(c, q0g[i] + 16, 1, LR + 2)
    c.g[q0g[16]]["pre"] += xor_regs(VA[0], 8, sVA1)
    e = c.g[-1]["post"]
    e += o_check(c, "A0", LR, QF[0], "v", o[0], "KA", "VA", sBXkA, 0, 0)
    e += o_check(c, "A1", LR + 2, QF[1], "v", o[1], "KA", "VA", sBXkA, 0, 2)
    e += o_convert("v", o[0], 0, SP) + ex_write(SP) + ex_read(EXW, RR[0], None)
    e += o_convert("v", o[1], 2, SP + 32)
    e += c.stamp()
    c.pending = [(0, ex_read(EXR, RR[1], "exr")), (2, ex_write(SP + 32) + ex_read(EXW, RR[2], None)), (4, ex_read(EXR, RR[3], "exr"))]

def flush_pending(c, gaps):
    for k, ins in c.pending:
        g = gaps[k]
        for i, x in enumerate(ins): c.g[g + (i * 8) // len(ins)]["rd"].append(x)
        c.g[gaps[k + 2]]["sync"].insert(0, Pseudo("waitlds", "exr"))
    c.pending = []

def out_store(c, nb):
    e = []
    for f in range(8):
        a = BIG + 64 * nb + 8 * f; d = SP + 32 * nb + 4 * f
        x = [I("v_cvt_pk_bf16_f32 v%d, v%d, v%d" % (d + k, a + 2 * k, a + 2 * k + 1)) for k in range(4)]
        if f % 4 == 0: x.append(I("s_xor_b32 s%d, s%d, 0x%x" % (sT2, sPB, (nb << 13) ^ ((f >> 2) << 12) ^ ((1 << 24) if c.br == "B" else 0))))
        x.append(I("buffer_store_dwordx4 %s, v%d, %s, s%d offen offset:%d %s" % (vr(d, 4), VL16, srd("WS"), sT2, (f & 3) * 1024, O.st), tag="st"))
        e.append(x)
    return e

def blk_O(c, r, own, part):
    gaps = []
    for nb in range(2):
        for j in range(2):
            for db in range(4):
                gaps.append(wstep(c, db & 1, "v", BIG + 64 * nb, "a", (part if j else own) + 8 * db, r == 0 and j == 0 and db == 0))
    if r == 1:
        for f, x in enumerate(out_store(c, 0)):
            g = gaps[9] + 4 * f
            for i, y in enumerate(x): c.g[g + min(i, 3)]["va"].append(y)
        for x in out_store(c, 1): c.g[-1]["post"] += x
    c.g[-1]["post"] += c.stamp()
    return gaps

def part(br):
    c = Sched(br); c.pending = []
    blk_X(c)
    if br == "B":
        blk_Q(c, 0); blk_ATB(c, 0)
        n0 = len(c.g); blk_Q(c, 1); flush_pending(c, [n0 + 8 * k for k in range(8)])
        blk_O(c, 0, RR[2], RR[3]); blk_ATB(c, 1)
        flush_pending(c, blk_O(c, 1, RR[2], RR[3]))
    else:
        blk_Q(c, 0); blk_Q(c, 1); blk_ATA(c)
        flush_pending(c, blk_O(c, 0, RR[0], RR[1]))
        blk_O(c, 1, RR[2], RR[3])
    assert c.s == c.n
    other = "A" if br == "B" else "B"
    seq = [Pseudo("reset", [("slot", s) for s in range(1, 7) for _ in range(4)]), I(".p2align 6"), I("L_part_%s:" % br)]
    seq += c.flat()
    seq += L("s_cmp_eq_u32 s%d, 1\ns_cbranch_scc1 L_done" % sPhase)
    seq += L("s_mov_b32 s%d, 1\ns_mov_b32 s%d, 0\ns_mov_b32 s%d, 0\ns_xor_b32 s%d, s%d, 0x10000" % (sPhase, SRD["X" + br] + 2, SRD["WQ" + br] + 2, sM, sM))
    seq += xor_regs(KA[0], 16, sXB2 if br == "B" else sXA2)
    seq += [I("v_xor_b32 v%d, 0x10000, v%d" % (VA[0] + i, VA[0] + i)) for i in range(8)]
    seq += L("s_nop 4\ns_branch L_part_%s" % other)
    return seq, c.tail

def mk_srd(d, b, n): return L("s_mov_b32 s%d, s%d\ns_and_b32 s%d, s%d, 0xffff\ns_mov_b32 s%d, 0x%x\ns_mov_b32 s%d, 0x20000" % (d, b, d + 1, b + 1, d + 2, n, d + 3))

def prologue():
    e = L("s_cmp_ge_u32 s2, 256\ns_cbranch_scc1 L_end")
    e += L("s_load_dwordx16 s[64:79], s[0:1], 0\ns_load_dwordx4 s[80:83], s[0:1], 64\ns_load_dwordx2 s[84:85], s[0:1], 96")
    if O.stamps: e += L("s_memrealtime s[100:101]")
    e += L("v_lshrrev_b32 v1, 6, v0\nv_and_b32 v2, 63, v0\nv_readfirstlane_b32 s%d, v1" % sW)
    e += L("v_lshrrev_b32 v3, 4, v2\nv_and_b32 v4, 15, v2\nv_lshlrev_b32 v%d, 4, v2" % VL16)
    e += L("s_lshr_b32 s4, s2, 3\ns_and_b32 s5, s2, 7")
    e += L("s_lshr_b32 s6, s4, 1" if O.rot else "s_mov_b32 s6, 0")
    e += L("s_waitcnt lgkmcnt(0)")
    for nm, b, n in (("XA", 64, 1 << 21), ("KA", 66, 1 << 25), ("VA", 68, 1 << 25), ("WQA", 70, 1 << 22), ("WOA", 72, 1 << 22),
                     ("XB", 74, 1 << 21), ("KB", 76, 1 << 27), ("VB", 78, 1 << 27), ("WQB", 80, 1 << 22), ("WOB", 82, 1 << 22), ("WS", 84, 1 << 29)):
        e += mk_srd(SRD[nm], b, n)
    d = SRD["KVA"]
    e += L("s_cmp_lt_u32 s%d, 2\ns_cselect_b32 s%d, s%d, s%d\ns_cselect_b32 s%d, s%d, s%d\ns_mov_b32 s%d, 0x%x\ns_mov_b32 s%d, 0x20000"
           % (sW, d, SRD["KA"], SRD["VA"], d + 1, SRD["KA"] + 1, SRD["VA"] + 1, d + 2, 1 << 25, d + 3))
    e += L("s_lshr_b32 s90, s%d, 1\ns_and_b32 s91, s%d, 1\ns_and_b32 s92, s6, 1\ns_bfe_u32 s93, s6, 0x20001\ns_lshr_b32 s94, s6, 3\ns_and_b32 s95, s6, 3\ns_lshr_b32 s96, s6, 2" % (sW, sW))
    def bits(dst, items):
        x = []
        for i, (src, sh) in enumerate(items):
            if i == 0: x += L("s_lshl_b32 s%d, s%d, %d" % (dst, src, sh))
            else: x += L("s_lshl_b32 s7, s%d, %d\ns_xor_b32 s%d, s%d, s7" % (src, sh, dst, dst))
        return x
    e += bits(sBXx, [(4, 16), (sW, 14), (96, 8)])
    e += bits(sBXq, [(5, 10), (90, 8), (91, 17), (6, 18), (92, 9)])
    e += bits(sM, [(sW, 12)])
    e += L("v_xor_b32 v5, v4, v3\nv_lshlrev_b32 v5, 4, v5")
    e += L("v_lshlrev_b32 v6, 2, v3\nv_xor_b32 v6, v4, v6\nv_lshlrev_b32 v6, 4, v6")
    e += L("s_lshl_b32 s7, s95, 6\nv_xor_b32 v7, s7, v5")
    for i in range(4):
        e += L("v_xor_b32 v1, %d, v7\nv_lshl_add_u32 v1, v3, 10, v1\nv_add_u32 v%d, %d, v1" % (i << 6, VX + i, i * 3072))
    e += L("v_lshl_add_u32 v1, v3, 13, v6")
    for i in range(4): e += L("v_add_u32 v%d, %d, v1" % (VQ + i, 4 * swap2(i) * 8192 - i * 1024))
    cls = L("s_and_b32 s7, s4, 1") if O.cls is None else L("s_mov_b32 s7, %d" % O.cls)
    e += cls + L("s_cmp_eq_u32 s7, 1\ns_cselect_b32 s97, 1, 0\ns_cbranch_scc1 L_first_A")
    for br in ("B", "A"):
        if br == "A": e += L("s_branch L_first_done\nL_first_A:")
        for s, dsc in enumerate(slots_of(br)[:7]):
            su, ld = load_slot(dsc, s, None); e += su + ld
    e += L("L_first_done:")
    e += bits(sBXo, [(5, 19), (92, 18), (90, 17), (93, 15), (91, 14), (90, 9), (94, 8)])
    e += bits(sBXkB, [(4, 22), (5, 19), (92, 18), (90, 17), (90, 13), (91, 12)])
    e += bits(sBXkA, [(4, 20), (5, 17), (92, 13), (91, 12)])
    e += bits(sPB, [(4, 19), (5, 16), (sW, 14), (94, 13)])
    e += bits(sXB1, [(90, 13), (91, 13)]) + bits(sXA1, [(91, 13)])
    e += L("s_xor_b32 s%d, s%d, 0x10000\ns_xor_b32 s%d, s%d, 0x10000" % (sXB2, sXB1, sXA2, sXA1))
    e += L("s_lshl_b32 s%d, s90, 13\ns_xor_b32 s%d, s%d, 0x2000" % (sVA1, sVA1, sVA1))
    e += L("s_mov_b32 s%d, 0x%x\ns_mov_b32 s%d, 0x%x\ns_mov_b32 s%d, 0x%x\ns_mov_b32 s%d, 0x%x\ns_mov_b32 s%d, 0"
           % (sC, f32(math.log2(math.e) / math.sqrt(128)), sC + 1, f32(math.log2(math.e) / math.sqrt(128)), sLo, f32(2.0 ** -32), sHi, f32(2.0 ** 48), sPhase))
    e += L("s_lshl_b32 s%d, s%d, 13\ns_add_u32 s%d, s%d, %d" % (sEX, sW, sEX, sEX, EXBASE))
    e += L("v_add_u32 v%d, s%d, v%d\nv_xor_b32 v%d, 0x4000, v%d" % (EXW, sEX, VL16, EXR, EXW))
    e += L("v_lshl_add_u32 v1, v3, 10, v6")
    for i in range(4): e += L("v_add_u32 v%d, %d, v1" % (VO + i, 4 * swap2(i) * 1024 - i * 1024))
    e += L("v_lshl_add_u32 v1, v3, 8, v5")
    for i in range(4): e += L("v_xor_b32 v%d, %d, v1" % (VK + i, i << 6))
    e += L("s_lshl_b32 s7, s93, 6\nv_lshl_add_u32 v1, v3, 8, v6\nv_xor_b32 v%d, s7, v1" % VV)
    e += L("s_cmp_lt_u32 s%d, 2\ns_cselect_b64 vcc, -1, 0" % sW)
    for i in range(4): e += L("v_cndmask_b32 v%d, v%d, v%d, vcc" % (VKVA + i, VV, VK + i))
    e += L("v_and_b32 v1, 31, v2\nv_lshrrev_b32 v5, 5, v2\nv_xor_b32 v6, v5, v4\nv_lshlrev_b32 v6, 4, v6\nv_lshl_add_u32 v6, v1, 8, v6\nv_xor_b32 v6, s%d, v6" % sXA1)
    for t in range(8): e += L("v_xor_b32 v%d, %d, v6\nv_xor_b32 v%d, 0x%x, v6" % (KA[0] + t, t << 5, KA[1] + t, (t << 5) | 0x10000))
    e += L("v_bfe_u32 v1, v2, 2, 2\nv_lshl_add_u32 v6, v5, 2, v1\nv_lshlrev_b32 v6, 8, v6\nv_lshl_add_u32 v6, v1, 6, v6")
    e += L("v_and_b32 v1, 1, v3\nv_lshl_add_u32 v6, v1, 5, v6\nv_and_b32 v1, 1, v2\nv_lshl_add_u32 v6, v1, 4, v6\nv_bfe_u32 v1, v2, 1, 1\nv_lshl_add_u32 v6, v1, 3, v6")
    e += L("s_lshl_b32 s7, s90, 13\nv_xor_b32 v6, s7, v6")
    for db in range(4): e += L("v_xor_b32 v%d, %d, v6\nv_xor_b32 v%d, 0x%x, v6" % (VA[0] + db, db << 6, VA[1] + db, (db << 6) | 0x10000))
    e += L("s_waitcnt vmcnt(24)\ns_barrier\ns_cmp_eq_u32 s97, 1\ns_cbranch_scc1 L_part_A")
    return e

def main_kernel():
    seq = prologue()
    pb, tb = part("B"); pa, ta = part("A")
    seq += pb + pa
    seq += [Pseudo("reset"), I("L_done:")]
    if O.stamps:
        seq += L("s_waitcnt vmcnt(0)\ns_barrier\ns_memrealtime s[82:83]\ns_waitcnt lgkmcnt(0)")
        seq += L("v_mov_b32 v0, s100\nv_mov_b32 v1, s101\nv_mov_b32 v2, s82\nv_mov_b32 v3, s83\ns_lshl_b32 s7, s2, 4\ns_add_u32 s7, s7, 0x%x\nv_mov_b32 v4, s7" % WS_STAMP)
        seq += L("buffer_store_dwordx4 v[0:3], v4, %s, 0 offen" % srd("WS"))
        seq += L("s_lshl_b32 s7, s2, 6\ns_add_u32 s7, s7, 0x%x\nv_mov_b32 v4, s7" % (WS_STAMP + 65536))
        for i in range(16):
            seq += L("s_sub_u32 s7, s%d, s100\nv_mov_b32 v5, s7\nbuffer_store_dword v5, v4, %s, 0 offen offset:%d" % (sST + i, srd("WS"), 4 * i))
    seq += L("L_end:\ns_endpgm")
    seq += tb + ta
    return seq

def reduce_kernel():
    e = L("s_cmp_ge_u32 s2, 512\ns_cbranch_scc1 L_rend")
    e += L("s_load_dwordx2 s[4:5], s[0:1], 96\ns_load_dwordx2 s[6:7], s[0:1], 80")
    e += L("v_lshrrev_b32 v1, 6, v0\nv_and_b32 v2, 63, v0\nv_lshlrev_b32 v3, 4, v2\nv_lshl_add_u32 v3, v1, 11, v3")
    e += L("s_lshr_b32 s16, s2, 8\ns_bfe_u32 s17, s2, 0x50003\ns_bfe_u32 s18, s2, 0x20001\ns_and_b32 s19, s2, 1")
    e += L("s_lshl_b32 s20, s16, 24\ns_lshl_b32 s21, s17, 19\ns_add_u32 s20, s20, s21\ns_and_b32 s21, s2, 7\ns_lshl_b32 s21, s21, 13\ns_add_u32 s20, s20, s21")
    e += L("s_waitcnt lgkmcnt(0)")
    e += mk_srd(8, 4, 1 << 29) + mk_srd(12, 6, 1 << 22)
    for g in range(8):
        for u in range(2):
            e.append(I("buffer_load_dwordx4 %s, v3, s[8:11], s20 offen offset:%d %s" % (vr(8 + 8 * g + 4 * u, 4), u * 1024, O.rl)))
        e += L("s_add_u32 s20, s20, 0x10000")
    e += L("v_and_b32 v4, 31, v2\nv_lshlrev_b32 v4, 11, v4\nv_lshrrev_b32 v5, 5, v2\nv_lshl_add_u32 v4, v5, 4, v4\nv_lshl_add_u32 v4, v1, 6, v4")
    e += L("s_lshl_b32 s22, s17, 17\ns_and_b32 s21, s18, 1\ns_lshl_b32 s21, s21, 16\ns_add_u32 s22, s22, s21\ns_lshl_b32 s21, s16, 10\ns_add_u32 s22, s22, s21")
    e += L("s_lshr_b32 s21, s18, 1\ns_lshl_b32 s21, s21, 9\ns_add_u32 s22, s22, s21\ns_lshl_b32 s21, s19, 8\ns_add_u32 s22, s22, s21")
    for g in range(8):
        for k in range(8):
            src = 8 + 8 * g + k
            if g == 0:
                e += L("v_lshlrev_b32 v%d, 16, v%d\nv_and_b32 v%d, 0xffff0000, v%d" % (72 + 2 * k, src, 73 + 2 * k, src))
            else:
                e += L("v_lshlrev_b32 v6, 16, v%d\nv_and_b32 v7, 0xffff0000, v%d\nv_add_f32 v%d, v%d, v6\nv_add_f32 v%d, v%d, v7" % (src, src, 72 + 2 * k, 72 + 2 * k, 73 + 2 * k, 73 + 2 * k))
    for k in range(8): e += L("v_cvt_pk_bf16_f32 v%d, v%d, v%d" % (8 + k, 72 + 2 * k, 73 + 2 * k))
    for u in range(2): e += L("buffer_store_dwordx4 %s, v4, s[12:15], s22 offen offset:%d" % (vr(8 + 4 * u, 4), u * 32))
    e += L("L_rend:\ns_endpgm")
    return e

def kd(name, vgpr, accum, sgpr):
    return ('.amdhsa_kernel %s\n  .amdhsa_next_free_vgpr %d\n  .amdhsa_next_free_sgpr %d\n  .amdhsa_accum_offset %d\n'
            '  .amdhsa_group_segment_fixed_size 0\n  .amdhsa_kernarg_size 104\n  .amdhsa_user_sgpr_count 2\n'
            '  .amdhsa_user_sgpr_kernarg_segment_ptr 1\n  .amdhsa_system_sgpr_workgroup_id_x 1\n.end_amdhsa_kernel\n' % (name, vgpr, sgpr, accum))

def build():
    k1 = NAME + "_kernel"; k2 = "reduce_partials_kernel"
    st = {}
    s = HEADER
    s += "; @launch kernel=%s grid=(256,1,1) block=(256,1,1) lds=163840\n" % k1
    s += "; @launch kernel=%s grid=(512,1,1) block=(256,1,1) lds=0\n" % k2
    s += '.amdgcn_target "amdgcn-amd-amdhsa--gfx950"\n.text\n'
    s += ".globl %s\n.p2align 8\n.type %s,@function\n%s:\n" % (k1, k1, k1)
    s += "\n".join(finalize(main_kernel(), st)) + "\n"
    s += ".globl %s\n.p2align 8\n.type %s,@function\n%s:\n" % (k2, k2, k2)
    s += "\n".join(finalize(reduce_kernel())) + "\n"
    s += '.section .rodata,"a"\n.p2align 6\n' + kd(k1, 512, 256, 102) + ".p2align 6\n" + kd(k2, 88, 88, 32)
    sys.stderr.write("main: %s\n" % st)
    return s

if __name__ == "__main__":
    out = sys.argv[1]
    for a in sys.argv[2:]:
        k, v = a.split("=")
        cur = getattr(O, k)
        setattr(O, k, v.replace("+", " ") if isinstance(cur, str) else int(v))
    open(out, "w").write(build())
```
